```python
import torch

def _softmax(x, axis=-1):
    return torch.softmax(x, dim=axis)
def _gelu(x):
    return torch.nn.functional.gelu(x, approximate="tanh")
def _silu(x):
    return torch.nn.functional.silu(x)
def _sigmoid(x):
    return torch.sigmoid(x)
def _layernorm(x, axis=-1, eps=1e-5):
    m = x.mean(dim=axis, keepdim=True)
    v = x.var(dim=axis, keepdim=True, unbiased=False)
    return (x - m) / torch.sqrt(v + eps)
def _scatter_add(tgt, idx, src, axis=0):
    return tgt.clone().index_add_(axis, idx, src)
def _segment_sum(src, seg, n):
    out = torch.zeros((n,) + src.shape[1:], dtype=src.dtype)
    return out.index_add_(0, seg, src)
def _pad(x, pw):
    flat = tuple(v for pair in reversed(pw) for v in pair)
    return torch.nn.functional.pad(x, flat)

kernel_name = 'standalone__weight_only_int_quip__prompt'

def setup_inputs():

    _w = (lambda a: (lambda t: t.to(torch.bfloat16) if t.is_floating_point() else t)(torch.as_tensor(a)))
    B, S, D, F = 1, 2048, 1024, 3584
    G = 64 if 64 > 0 else D
    D = (D // G) * G
    ng = D // G
    bits = 4 if 4 > 0 else 4
    qmax = 1 << bits
    qw = torch.randint(0, qmax, (D, F)).to(torch.int32)
    U, _ = (lambda *_a, **_k: torch.linalg.qr(*[torch.as_tensor(_x).float() for _x in _a], **_k))((lambda *s: torch.randn(*s, dtype=torch.bfloat16) * 0.05)(D, D))
    V, _ = (lambda *_a, **_k: torch.linalg.qr(*[torch.as_tensor(_x).float() for _x in _a], **_k))((lambda *s: torch.randn(*s, dtype=torch.bfloat16) * 0.05)(F, F))
    return {
        "x": _w((lambda *s: torch.randn(*s, dtype=torch.bfloat16) * 0.05)(B, S, D)),
        "qw": _w(qw),
        "scales": _w(torch.abs((lambda *s: torch.randn(*s, dtype=torch.bfloat16) * 0.05)(ng, F)) * 0.02 + 0.005),
        "zeros": _w(torch.full((ng, F), qmax / 2.0, dtype=float)),
        "U": _w(U.to(float)),
        "V": _w(V.to(float)),
    }

def reference(x, qw, scales, zeros, U, V):
    B, S, D = x.shape
    ng, F = scales.shape
    G = D // ng
    s = (lambda x, n, axis: torch.repeat_interleave(x, n, dim=axis))(scales, G, axis=0)
    z = (lambda x, n, axis: torch.repeat_interleave(x, n, dim=axis))(zeros, G, axis=0)
    wq = ((lambda x, dt: x.to(dt))(qw, x.dtype) - z) * s
    xr = torch.einsum("bsd,de->bse", x, U)
    h  = torch.einsum("bse,ef->bsf", xr, wq)
    y  = torch.einsum("bsf,fg->bsg", h, V)
    return y
```

```python
class Trace:
    def __init__(self):
        self.items = []
    def i(self, text):
        for l in text.split("\n"):
            l = l.strip()
            if l: self.items.append(('i', l))
    def vm(self, tag, text): self.items.append(('vm', tag, text))
    def ds(self, tag, text): self.items.append(('ds', tag, text))
    def wvm(self, tag): self.items.append(('wvm', tag))
    def wds(self, tag): self.items.append(('wds', tag))

def resolve(segments):
    vm_idx = {}; ds_idx = {}
    nvm = 0; nds = 0
    vm_done = 0; ds_done = 0
    out = []
    for kind, traces in segments:
        need = None
        for t in traces:
            cur = []
            for it in t.items:
                if it[0] == 'i':
                    cur.append(('t', it[1]))
                elif it[0] == 'vm':
                    nvm += 1; vm_idx[it[1]] = nvm; cur.append(('t', it[2]))
                elif it[0] == 'ds':
                    nds += 1; ds_idx[it[1]] = nds; cur.append(('t', it[2]))
                elif it[0] == 'wvm':
                    assert it[1] in vm_idx, ("vm tag not issued", it[1])
                    cur.append(('wvm', nvm - vm_idx[it[1]]))
                elif it[0] == 'wds':
                    assert it[1] in ds_idx, ("ds tag not issued", it[1])
                    cur.append(('wds', nds - ds_idx[it[1]]))
            if need is None: need = cur
            else:
                assert len(need) == len(cur), "loop body length differs"
                for k, (a, b) in enumerate(zip(need, cur)):
                    assert a[0] == b[0]
                    if a[0] == 't': assert a[1] == b[1], ("loop text differs", a[1], b[1])
                    else: need[k] = (a[0], min(a[1], b[1]))
        lines = []
        for a in need:
            if a[0] == 't': lines.append(a[1])
            elif a[0] == 'wvm': lines.append(f"s_waitcnt vmcnt({min(a[1],63)})")
            else: lines.append(f"s_waitcnt lgkmcnt({min(a[1],15)})")
        merged = []
        for l in lines:
            if l.startswith("s_waitcnt") and merged and merged[-1].startswith("s_waitcnt"):
                import re
                d = {}
                for x in (merged[-1], l):
                    for nm, v in re.findall(r"(vmcnt|lgkmcnt)\((\d+)\)", x):
                        d[nm] = min(d.get(nm, 99), int(v))
                merged[-1] = "s_waitcnt " + " ".join(f"{k}({d[k]})" for k in ("vmcnt", "lgkmcnt") if k in d)
            else: merged.append(l)
        out.append(merged)
    return out

def prune_waits(lines):
    import re
    res = []
    cur = {'vmcnt': 99, 'lgkmcnt': 99}
    for l in lines:
        if l.endswith(":") or l.startswith("s_cbranch") or l.startswith("s_branch"):
            cur = {'vmcnt': 99, 'lgkmcnt': 99}; res.append(l); continue
        if l.startswith("s_waitcnt"):
            keep = {}
            for nm, v in re.findall(r"(vmcnt|lgkmcnt)\((\d+)\)", l):
                v = int(v)
                if v < cur[nm]: keep[nm] = v; cur[nm] = v
            if keep: res.append("s_waitcnt " + " ".join(f"{k}({keep[k]})" for k in ("vmcnt", "lgkmcnt") if k in keep))
            continue
        if l.startswith("buffer_") or l.startswith("global_"):
            if cur['vmcnt'] < 99: cur['vmcnt'] += 1
        if l.startswith("ds_") :
            if cur['lgkmcnt'] < 99: cur['lgkmcnt'] += 1
        if l.startswith("s_load") or l.startswith("s_memtime") or l.startswith("s_memrealtime") or l.startswith("s_buffer_load"):
            cur['lgkmcnt'] = 99
        res.append(l)
    return res

def kd(name, vgpr, accum, sgpr=102):
    return f""".p2align 6
.amdhsa_kernel {name}
  .amdhsa_next_free_vgpr {vgpr}
  .amdhsa_next_free_sgpr {sgpr}
  .amdhsa_accum_offset {accum}
  .amdhsa_group_segment_fixed_size 0
  .amdhsa_kernarg_size 72
  .amdhsa_user_sgpr_count 2
  .amdhsa_user_sgpr_kernarg_segment_ptr 1
  .amdhsa_system_sgpr_workgroup_id_x 1
  .amdhsa_float_denorm_mode_32 3
.end_amdhsa_kernel"""

import re as _re
def _regs(tok):
    tok = tok.strip()
    neg = tok.lstrip('-')
    m = _re.fullmatch(r"([vas])\[(\d+):(\d+)\]", neg)
    if m: return {(m.group(1), i) for i in range(int(m.group(2)), int(m.group(3))+1)}
    m = _re.fullmatch(r"([vas])(\d+)", neg)
    if m: return {(m.group(1), int(m.group(2)))}
    if neg in ("vcc", "m0", "exec"): return {(neg, 0)}
    return set()
def _parse(l):
    l = l.split(";")[0].strip()
    if not l or l.endswith(":") or l.startswith("."): return None
    p = l.split(None, 1); op = p[0]
    args = [a.strip() for a in p[1].split(",")] if len(p) > 1 else []
    if args: args[-1:] = args[-1].split()[:1]
    R = [_regs(a) for a in args]
    w = set(); r = set(); kind = "other"; extra = {}
    if op.startswith("v_mfma"):
        kind = "mfma"; w = R[0]; r = R[1] | R[2] | R[3]; extra = dict(ab=R[1] | R[2], c=R[3])
    elif op.startswith("v_cmp"):
        kind = "valu"; w = R[0]; r = set().union(*R[1:])
    elif op.startswith("v_swap"):
        kind = "valu"; w = R[0] | R[1]; r = w
    elif op.startswith("v_"):
        kind = "valu"; w = R[0]; r = set().union(*R[1:]) if len(R) > 1 else set()
        if op.startswith("v_fmac") or op.startswith("v_writelane"): r |= R[0]
        if op.startswith("v_cndmask") and len(R) == 3: r |= {("vcc", 0)}
    elif op.startswith("buffer_load"):
        kind = "vmem"
        if " lds" in l: r = set().union(*R) | {("m0", 0)}; extra = dict(lds=True)
        else: w = R[0]; r = set().union(*R[1:])
    elif op.startswith("buffer_store") or op.startswith("buffer_atomic"):
        kind = "vmem"; r = set().union(*R); extra = dict(wide=("x4" in op or "x3" in op), data=R[0])
    elif op.startswith("ds_read"):
        kind = "ds"; w = R[0]; r = set().union(*R[1:])
    elif op.startswith("ds_"):
        kind = "ds"; r = set().union(*R)
    elif op.startswith("s_nop"):
        return dict(op=op, kind="nop", n=int(args[0])+1, w=set(), r=set(), text=l)
    elif op.startswith("s_"):
        kind = "salu"
        if op.startswith(("s_cmp", "s_cbranch", "s_branch", "s_waitcnt", "s_barrier", "s_endpgm", "s_setprio", "s_sleep")): r = set().union(*R) if R else set()
        else: w = R[0] if R else set(); r = set().union(*R[1:]) if len(R) > 1 else set()
    d = dict(op=op, kind=kind, n=1, w=w, r=r, text=l); d.update(extra); return d
def hazard_check(lines, name=""):
    ins = [x for x in (_parse(l) for ll in lines for l in ll.split("\n")) if x]
    bad = []
    for i, c in enumerate(ins):
        dist = 0
        for k in range(i-1, max(-1, i-14), -1):
            p = ins[k]
            need = 0
            isv = lambda S: {x for x in S if x[0] in "va" and len(x[0]) == 1}
            iss = lambda S: {x for x in S if x[0] in ("s", "vcc")}
            if p['kind'] == 'mfma':
                if c['kind'] in ('valu', 'vmem', 'ds') and p['w'] & (c['r'] | c['w']): need = 8
                if c['kind'] == 'mfma':
                    if p['w'] & c['ab']: need = 8
                    elif p['w'] & c['c'] and p['w'] != c['c']: need = 6
                if c['kind'] == 'valu' and p['c'] & c['w']: need = max(need, 3)
            if p['kind'] == 'valu':
                if c['kind'] == 'mfma' and isv(p['w']) & c['r']: need = 2
                if c['kind'] == 'vmem' and iss(p['w']) & c['r']: need = 5
                if c['kind'] == 'valu' and iss(p['w']) & c['r']: need = 2
                if c['op'].startswith(('v_readfirstlane', 'v_readlane')) and isv(p['w']) & c['r']: need = 1
                if c['op'].startswith('v_permlane') and isv(p['w']) & (c['r'] | c['w']): need = 2
                if 'dpp' in c['text'] or 'quad_perm' in c['text'] or 'row_' in c['text']:
                    if isv(p['w']) & c['r']: need = 2
            if p['kind'] == 'salu' and ('m0', 0) in p['w'] and c.get('lds'): need = 1
            if p['kind'] == 'vmem' and p.get('wide') and p['data'] & c['w']: need = 2 if c['kind'] == 'valu' else 1
            if need > dist: bad.append((need, dist, p['text'], c['text']))
            dist += p['n']
            if p['op'].startswith(('s_branch', 's_endpgm')): break
    for b in bad: print("HAZARD", name, b)
    return bad
```

```python
import sys
from asmlib import kd
src = open(sys.argv[1]).read()
lines = src.split("\n")
launch = {l.split("kernel=")[1].split()[0]: l for l in lines if l.startswith("; @launch")}
first = min(i for i, l in enumerate(lines) if l.startswith("; @launch"))
body = [l for l in lines if not l.startswith("; @launch")]
launch["empty_kernel"] = "; @launch kernel=empty_kernel grid=(256,1,1) block=(256,1,1) lds=0"
empty = ".p2align 8\n.globl empty_kernel\n.type empty_kernel,@function\nempty_kernel:\ns_endpgm"
def mk(out, names):
    b = list(body)
    b[first:first] = [launch[n] for n in names]
    txt = "\n".join(b)
    if "empty_kernel" in names:
        txt = txt.replace('.section .rodata,"a"', empty + '\n.section .rodata,"a"\n' + kd("empty_kernel", 8, 8))
    open(out, "w").write(txt)
K, Y, E = "k1_kernel", "y_kernel", "empty_kernel"
mk("var_a.s", [K, Y]); mk("var_b.s", [K, Y, E]); mk("var_c.s", [E, K, Y]); mk("var_d.s", [K, Y, Y]); mk("var_e.s", [K, K, Y]); mk("var_f.s", [K, Y, E, E, E, E])
```

```python
from asmlib import *
ROW = 7168; QROW = 14336; XROW = 2048
V_BYTES = 3584*ROW
FS = 2048
WS_A, WS_W2, WS_XR, WS_EX, WS_FL, WS_TS = 0, 0x1000000, 0x2000000, 0x3000000, 0x6000000, 0x6400000
ASUB = 16*FS; APANEL = 112*ASUB
W2T = 32*7*FS
XRB = 32*4*FS
SUB = 8448
LDS_BYTES = 16*SUB
FL_H1 = 0
FL_H2 = 1024
FL_H3 = FL_H2 + 224*128
FL_H4 = FL_H3 + 28*128
FL_BYTES = 36*1024
assert FL_H4 + 1024 <= FL_BYTES
NSTAMP = 8
def stamp(t, idx):
    b = 64 + 4*idx
    t.i(f"s_memtime s[{b}:{b+1}]\ns_memrealtime s[{b+2}:{b+3}]")
def ts_store(E, slot=0, last=7):
    E.i("s_waitcnt vmcnt(0)")
    stamp(E, last)
    E.i(f"""
    s_waitcnt lgkmcnt(0)
    s_add_u32 s12, s24, {WS_TS + slot*0x20000}
    s_addc_u32 s13, s25, 0
    s_mov_b32 s14, 0x100000
    s_mov_b32 s15, 0x20000
    s_lshl_b32 s26, s2, 2
    s_add_u32 s26, s26, s21
    s_lshl_b32 s26, s26, 7
    s_mov_b64 exec, 1
    v_mov_b32 v0, 0
    """)
    for k in range(NSTAMP):
        for r in range(4): E.i(f"v_mov_b32 v{4+r}, s{64+4*k+r}")
        E.i(f"buffer_store_dwordx4 v[4:7], v0, s[12:15], s26 offen offset:{k*16}\ns_nop 1")
def lanepat(t, dst, t1, t2, lane="v0"):
    t.i(f"""
    v_lshrrev_b32 v{t1}, 3, {lane}
    v_add_u32 v{t2}, 1, v{t1}
    v_lshrrev_b32 v{t2}, 3, v{t2}
    v_add3_u32 v{t1}, v{t1}, v{t2}, 4
    v_and_b32 v{t2}, 7, {lane}
    v_lshlrev_b32 v{t2}, 4, v{t2}
    v_lshl_add_u32 v{dst}, v{t1}, 7, v{t2}
    """)
SPIN_MAX = 0x40000
```

```python
import sys
from asmlib import kd
from g2common import WS_TS
def diag(slot, st, e0, e1, op, M):
    L = [""".p2align 8
.globl diag_kernel
.type diag_kernel,@function
diag_kernel:
s_cmp_ge_u32 s2, 1
s_cbranch_scc1 diag_end
s_load_dwordx4 s[24:27], s[0:1], 56
s_memrealtime s[30:31]
v_lshlrev_b32 v1, 7, v0
v_mov_b32 v2, -1
""" + f"v_mov_b32 v3, {0 if op != 'min' else -1}" + f"""
s_waitcnt lgkmcnt(0)
s_add_u32 s4, s26, {WS_TS}
s_addc_u32 s5, s27, 0
s_mov_b32 s6, 0x100000
s_mov_b32 s7, 0x20000"""]
    for it in range(16):
        L.append(f"s_mov_b32 s16, {it*64*128}\nbuffer_load_dword v{8+it}, v1, s[4:7], s16 offen offset:8")
    its = list(range(e0//64, e1//64))
    for it in its:
        L.append(f"s_mov_b32 s16, {slot*0x20000 + it*64*128}\nbuffer_load_dword v{24+it}, v1, s[4:7], s16 offen offset:{st*16+8}")
    L.append("s_waitcnt vmcnt(0)")
    for it in range(16): L.append(f"v_min_u32 v2, v2, v{8+it}")
    L.append("s_mov_b32 s8, -1\ns_nop 1")
    for l in range(64): L.append(f"v_readlane_b32 s10, v2, {l}\ns_nop 0\ns_min_u32 s8, s8, s10")
    L.append("s_nop 1")
    for it in its:
        L.append(f"v_subrev_u32 v{24+it}, s8, v{24+it}")
        L.append({'max': f"v_max_u32 v3, v3, v{24+it}", 'min': f"v_min_u32 v3, v3, v{24+it}", 'mean': f"v_add_u32 v3, v3, v{24+it}"}[op])
    L.append(f"s_mov_b32 s9, {0 if op != 'min' else -1}\ns_nop 1")
    for l in range(64): L.append(f"v_readlane_b32 s10, v3, {l}\ns_nop 0\n" + {'max': "s_max_u32", 'min': "s_min_u32", 'mean': "s_add_u32"}[op] + " s9, s9, s10")
    if op == 'mean':
        n = len(its)*64
        L.append(f"s_mul_hi_u32 s9, s9, {(1<<32)//n}")
    L.append(f"""s_min_u32 s9, s9, 20000
v_mov_b32 v4, s9
v_lshlrev_b32 v5, 8, v0
s_mov_b32 s26, 256
s_mov_b32 s27, 0x20000
buffer_store_dword v4, v5, s[24:27], 0 offen
s_mul_i32 s9, s9, {M}
s_add_u32 s9, s9, 500
diag_spin:
s_memrealtime s[32:33]
s_waitcnt lgkmcnt(0)
s_sub_u32 s32, s32, s30
s_cmp_lt_u32 s32, s9
s_cbranch_scc1 diag_spin
diag_end:
s_endpgm""")
    return "\n".join(L)
def mk(src, out, *a):
    lines = open(src).read().split("\n")
    last = max(i for i, l in enumerate(lines) if l.startswith("; @launch"))
    lines.insert(last+1, "; @launch kernel=diag_kernel grid=(1,1,1) block=(64,1,1) lds=0")
    txt = "\n".join(lines).replace('.section .rodata,"a"', diag(*a) + '\n.section .rodata,"a"\n' + kd("diag_kernel", 64, 64))
    open(out, "w").write(txt)
if __name__ == "__main__":
    src = sys.argv[1]
    specs = sys.argv[2:]
    mk(src, "dg_0.s", 0, 0, 0, 64, 'min', 0)
    for i, s in enumerate(specs):
        slot, st, role, op = s.split(",")
        e0, e1 = {'w': (128, 1024), 'x': (0, 128), 'a': (0, 1024)}[role]
        mk(src, f"dg_{i+1}.s", int(slot), int(st), e0, e1, op, 4)
```

```python
import sys
from asmlib import kd
WS_TS = 0x6400000
def red(op, base, sdst, n):
    L = [f"v_mov_b32 v3, {0 if op != 'min' else -1}"]
    for it in range(n):
        L.append(f"v_subrev_u32 v{base+it}, s8, v{base+it}")
        L.append({'max': f"v_max_u32 v3, v3, v{base+it}", 'min': f"v_min_u32 v3, v3, v{base+it}", 'mean': f"v_add_u32 v3, v3, v{base+it}"}[op])
    L.append(f"s_mov_b32 {sdst}, {0 if op != 'min' else -1}\ns_nop 1")
    for l in range(64): L.append(f"v_readlane_b32 s10, v3, {l}\ns_nop 0\n" + {'max': "s_max_u32", 'min': "s_min_u32", 'mean': "s_add_u32"}[op] + f" {sdst}, {sdst}, s10")
    if op == 'mean': L.append(f"s_mul_hi_u32 {sdst}, {sdst}, {(1<<32)//(n*64)}")
    return L
def diag(A, B, M):
    L = [""".p2align 8
.globl diag_kernel
.type diag_kernel,@function
diag_kernel:
s_cmp_ge_u32 s2, 1
s_cbranch_scc1 diag_end
s_load_dwordx4 s[24:27], s[0:1], 56
s_memrealtime s[30:31]
v_lshlrev_b32 v1, 7, v0
""" + f"""s_waitcnt lgkmcnt(0)
s_add_u32 s4, s26, {WS_TS}
s_addc_u32 s5, s27, 0
s_mov_b32 s6, 0x100000
s_mov_b32 s7, 0x20000
s_sub_u32 s8, s30, 20000"""]
    for base, (slot, st, op) in ((8, A), (24, B)):
        for it in range(14):
            L.append(f"s_mov_b32 s16, {slot*0x20000 + (it+2)*64*128}\nbuffer_load_dword v{base+it}, v1, s[4:7], s16 offen offset:{st*16+8}")
    L.append("s_waitcnt vmcnt(0)")
    L += red(A[2], 8, "s11", 14) + red(B[2], 24, "s9", 14)
    L.append(f"""s_sub_u32 s9, s9, s11
s_min_u32 s9, s9, 5000
v_mov_b32 v4, s9
v_lshlrev_b32 v5, 8, v0
s_mov_b32 s26, 256
s_mov_b32 s27, 0x20000
buffer_store_dword v4, v5, s[24:27], 0 offen
s_mul_i32 s9, s9, {M}
s_add_u32 s9, s9, 500
diag_spin:
s_memrealtime s[32:33]
s_waitcnt lgkmcnt(0)
s_sub_u32 s32, s32, s30
s_cmp_lt_u32 s32, s9
s_cbranch_scc1 diag_spin
diag_end:
s_endpgm""")
    return "\n".join(L)
def mk(src, out, A, B, M=20):
    lines = open(src).read().split("\n")
    last = max(i for i, l in enumerate(lines) if l.startswith("; @launch"))
    lines.insert(last+1, "; @launch kernel=diag_kernel grid=(1,1,1) block=(64,1,1) lds=0")
    txt = "\n".join(lines).replace('.section .rodata,"a"', diag(A, B, M) + '\n.section .rodata,"a"\n' + kd("diag_kernel", 64, 64))
    open(out, "w").write(txt)
if __name__ == "__main__":
    mk("d_ts.s", "dg_1.s", (1,6,'max'), (1,7,'max'))
    mk("d_ts.s", "dg_2.s", (1,6,'mean'), (1,7,'mean'))
    mk("d_ts.s", "dg_3.s", (1,6,'mean'), (1,6,'max'))
    mk("d_ts.s", "dg_4.s", (1,4,'mean'), (1,6,'mean'))
    mk("d_ts.s", "dg_5.s", (0,4,'mean'), (0,7,'mean'))
    mk("d_ts.s", "dg_6.s", (1,0,'mean'), (1,3,'mean'))
```

```python
import sys
from asmlib import kd
def probe(slot, nbytes, N=256, base=0):
    stride = (nbytes // N) & ~127
    return f""".p2align 8
.globl probe_kernel
.type probe_kernel,@function
probe_kernel:
s_cmp_ge_u32 s2, 1
s_cbranch_scc1 probe_end
s_load_dwordx2 s[4:5], s[0:1], {slot*8}
v_lshlrev_b32 v1, 28, v0
s_mov_b32 s16, {base}
s_mov_b32 s18, {N}
s_waitcnt lgkmcnt(0)
s_mov_b32 s6, {base + nbytes}
s_mov_b32 s7, 0x20000
s_mov_b64 exec, 1
probe_loop:
buffer_load_dword v2, v1, s[4:7], s16 offen nt
s_waitcnt vmcnt(0)
s_add_u32 s16, s16, {stride}
s_sub_u32 s18, s18, 1
s_cmp_lg_u32 s18, 0
s_cbranch_scc1 probe_loop
probe_end:
s_endpgm"""
def mk(src, out, *a):
    lines = open(src).read().split("\n")
    first = min(i for i, l in enumerate(lines) if l.startswith("; @launch"))
    lines.insert(first, "; @launch kernel=probe_kernel grid=(1,1,1) block=(64,1,1) lds=0")
    txt = "\n".join(lines).replace('.section .rodata,"a"', probe(*a) + '\n.section .rodata,"a"\n' + kd("probe_kernel", 8, 8))
    open(out, "w").write(txt)
if __name__ == "__main__":
    for i, (slot, nb) in enumerate(((0, 4194304), (1, 14680064), (4, 2097152), (5, 25690112), (6, 14680064), (8, 100<<20))):
        mk("best7l.s", f"pr_{i}.s", slot, nb)
```
